```python
import torch

def _softmax(x, axis=-1):
    return torch.softmax(x, dim=axis)
def _gelu(x):
    return torch.nn.functional.gelu(x, approximate="tanh")
def _silu(x):
    return torch.nn.functional.silu(x)
def _sigmoid(x):
    return torch.sigmoid(x)
def _layernorm(x, axis=-1, eps=1e-5):
    m = x.mean(dim=axis, keepdim=True)
    v = x.var(dim=axis, keepdim=True, unbiased=False)
    return (x - m) / torch.sqrt(v + eps)
def _scatter_add(tgt, idx, src, axis=0):
    return tgt.clone().index_add_(axis, idx, src)
def _segment_sum(src, seg, n):
    out = torch.zeros((n,) + src.shape[1:], dtype=src.dtype)
    return out.index_add_(0, seg, src)
def _pad(x, pw):
    flat = tuple(v for pair in reversed(pw) for v in pair)
    return torch.nn.functional.pad(x, flat)

kernel_name = 'recurrent_scan__ssm_conv_s4__dense_activation_gelu__prompt'

def setup_inputs():

    _w = (lambda a: (lambda t: t.to(torch.bfloat16) if t.is_floating_point() else t)(torch.as_tensor(a)))
    def _A_setup():
        B, L, D, N = 1, 2048, 640, 192
        A_re = -(lambda _x: torch.exp(torch.as_tensor(_x)))((lambda *s: torch.randn(*s, dtype=torch.bfloat16) * 3.2)(D, N))
        A_im = torch.pi * (lambda *s: torch.randn(*s, dtype=torch.bfloat16) * 0.2)(D, N)
        B_re = (lambda *s: torch.randn(*s, dtype=torch.bfloat16) * 0.2)(D, N)
        B_im = (lambda *s: torch.randn(*s, dtype=torch.bfloat16) * 0.2)(D, N)
        C_re = (lambda *s: torch.randn(*s, dtype=torch.bfloat16) * 0.2)(D, N)
        C_im = (lambda *s: torch.randn(*s, dtype=torch.bfloat16) * 0.2)(D, N)
        log_dt = (lambda *s: torch.randn(*s, dtype=torch.bfloat16) * 0.2)(D) * 0.5 - 4.0
        Dskip = (lambda *s: torch.randn(*s, dtype=torch.bfloat16) * 0.2)(D)
        return {
            "u": _w((lambda *s: torch.randn(*s, dtype=torch.bfloat16) * 0.05)(B, L, D)),
            "A_re": _w(A_re),
            "A_im": _w(A_im),
            "B_re": _w(B_re),
            "B_im": _w(B_im),
            "C_re": _w(C_re),
            "C_im": _w(C_im),
            "log_dt": _w(log_dt),
            "Dskip": _w(Dskip),
        }
    _A_in = _A_setup()

    def _B_setup():
        B, S, D, F = 1, 2048, 640, 1536
        return {
            "x": _w((lambda *s: torch.randn(*s, dtype=torch.bfloat16) * 0.05)(B, S, D)),
            "w1": _w((lambda *s: torch.randn(*s, dtype=torch.bfloat16) * 0.8)(D, F) * (D ** -0.5)),
            "b1": _w((lambda *s: torch.randn(*s, dtype=torch.bfloat16) * 0.1)(F) * 0.01),
            "w2": _w((lambda *s: torch.randn(*s, dtype=torch.bfloat16) * 0.1)(F, D) * (F ** -0.5)),
            "b2": _w((lambda *s: torch.randn(*s, dtype=torch.bfloat16) * 0.1)(D) * 0.01),
        }
    _B_in = _B_setup()

    return {
        "A_u": _A_in["u"],
        "A_A_re": _A_in["A_re"],
        "A_A_im": _A_in["A_im"],
        "A_B_re": _A_in["B_re"],
        "A_B_im": _A_in["B_im"],
        "A_C_re": _A_in["C_re"],
        "A_C_im": _A_in["C_im"],
        "A_log_dt": _A_in["log_dt"],
        "A_Dskip": _A_in["Dskip"],
        "B_x": _B_in["x"],
        "B_w1": _B_in["w1"],
        "B_b1": _B_in["b1"],
        "B_w2": _B_in["w2"],
        "B_b2": _B_in["b2"],
    }

def reference(A_u, A_A_re, A_A_im, A_B_re, A_B_im, A_C_re, A_C_im, A_log_dt, A_Dskip, B_x, B_w1, B_b1, B_w2, B_b2):
    def _A_ref(u, A_re, A_im, B_re, B_im, C_re, C_im, log_dt, Dskip):
        Bsz, L, D = u.shape
        dt = torch.exp(log_dt)[:, None]
        A = A_re + 1j * A_im
        Bc = B_re + 1j * B_im
        Cc = C_re + 1j * C_im
        logdA = dt * A
        dB = dt * Bc
        l = (lambda x, dt: x.to(dt))(torch.arange(L), A_re.dtype)
        P = torch.exp(logdA[:, :, None] * l[None, None, :])
        K = torch.einsum("dn,dnl,dn->dl", Cc, P, dB).real
        L2 = 2 * L
        Kp = _pad(K, ((0, 0), (0, L)))
        up = (lambda x, *d: x.permute(*d))(u, 0, 2, 1)
        up = _pad(up, ((0, 0), (0, 0), (0, L)))
        Kf = (lambda x, axes=(-2,-1): torch.fft.rfft2(x.float(), dim=axes))(Kp[:, None, :], axes=(-2, -1))
        Uf = (lambda x, axes=(-2,-1): torch.fft.rfft2(x.float(), dim=axes))(up[:, :, None, :], axes=(-2, -1))
        Yf = Uf * Kf[None, :, :, :]
        y = (lambda x, s, axes=(-2,-1): torch.fft.irfft2(x, s=s, dim=axes).to(torch.bfloat16))(Yf, (1, L2), axes=(-2, -1))[:, :, 0, :L]
        y = (lambda x, *d: x.permute(*d))(y, 0, 2, 1) + u * Dskip[None, None, :]
        return y

    def _B_ref(x, w1, b1, w2, b2):
        h = torch.einsum("bsd,df->bsf", x, w1) + b1
        h = _gelu(h)
        return torch.einsum("bsf,fd->bsd", h, w2) + b2

    x = A_u
    xn = _layernorm(x, axis=-1)
    s = _A_ref(xn, A_A_re, A_A_im, A_B_re, A_B_im, A_C_re, A_C_im, A_log_dt, A_Dskip)
    g = _silu(_B_ref(xn, B_w1, B_b1, B_w2, B_b2))
    return x + s * g
```

```python
import re

TRANS = ("v_exp_f32", "v_log_f32", "v_rcp_f32", "v_rsq_f32", "v_sqrt_f32", "v_sin_f32", "v_cos_f32")

_reg_re = re.compile(r"\b([vas])(\d+)\b|\b([vas])\[(\d+):(\d+)\]|\b(vcc|exec|m0|scc)\b")


def regs_of(tok):
    out = set()
    for m in _reg_re.finditer(tok):
        if m.group(1):
            out.add((m.group(1), int(m.group(2))))
        elif m.group(3):
            for i in range(int(m.group(4)), int(m.group(5)) + 1):
                out.add((m.group(3), i))
        else:
            out.add((m.group(6), 0))
    return out


def split_ops(s):
    ops, depth, cur = [], 0, ""
    for ch in s:
        if ch == "[":
            depth += 1
        if ch == "]":
            depth -= 1
        if ch == "," and depth == 0:
            ops.append(cur.strip())
            cur = ""
        else:
            cur += ch
    if cur.strip():
        ops.append(cur.strip())
    return ops


class Ins:
    def __init__(self, text):
        self.text = text
        t = text.split(";")[0].strip()
        parts = t.split(None, 1)
        self.op = parts[0]
        rest = parts[1] if len(parts) > 1 else ""
        ops = split_ops(rest)
        mods = ""
        if ops:
            last = ops[-1].split(None, 1)
            ops[-1] = last[0]
            mods = last[1] if len(last) > 1 else ""
        self.ops, self.mods = ops, mods
        op = self.op
        self.is_mfma = op.startswith("v_mfma")
        self.is_valu = op.startswith("v_") and not self.is_mfma
        self.is_trans = op.split("_e")[0] in TRANS or op in TRANS
        self.is_ds = op.startswith("ds_")
        self.is_vmem = op.startswith(("buffer_", "global_", "flat_"))
        self.is_salu = op.startswith("s_")
        self.is_dpp = "_dpp" in op or "row_" in mods or "quad_perm" in mods or "wave_" in mods
        self.is_permlane = op.startswith("v_permlane")
        self.is_dot = op.startswith("v_dot")
        self.passes = 0
        if self.is_mfma:
            self.passes = 8 if "32x32x16" in op else 4
        rd, wr = set(), set()
        R = [regs_of(o) for o in ops]
        lds_dma = self.is_vmem and re.search(r"\blds\b", mods) is not None
        self.lds_dma = lds_dma
        self.store_data = set()
        if self.is_mfma:
            wr |= R[0]
            rd |= R[1] | R[2] | R[3]
            self.srcc = R[3]
            self.srcab = R[1] | R[2]
        elif self.is_valu:
            if op.startswith("v_cmp"):
                wr |= R[0]
                for r in R[1:]:
                    rd |= r
                if op.startswith("v_cmpx"):
                    wr.add(("exec", 0))
            elif op.startswith(("v_add_co", "v_sub_co", "v_addc_co", "v_subb_co")):
                wr |= R[0] | R[1]
                for r in R[2:]:
                    rd |= r
            elif self.is_permlane:
                wr |= R[0] | R[1]
                rd |= R[0] | R[1]
            else:
                wr |= R[0]
                for r in R[1:]:
                    rd |= r
                if op.startswith(("v_fmac", "v_dot2c", "v_pk_fmac")) or self.is_dpp or "v_writelane" in op:
                    rd |= R[0]
                if op.startswith("v_cndmask") and len(ops) == 3:
                    rd.add(("vcc", 0))
        elif self.is_ds:
            if op.startswith(("ds_read", "ds_bpermute", "ds_swizzle")) or "_rtn" in op:
                wr |= R[0]
                for r in R[1:]:
                    rd |= r
                if "d16" in op:
                    rd |= R[0]
            else:
                for r in R:
                    rd |= r
        elif self.is_vmem:
            if "store" in op or ("atomic" in op):
                for r in R:
                    rd |= r
                if op.startswith("buffer_"):
                    self.store_data = R[0]
                else:
                    self.store_data = R[1]
            elif lds_dma or op in ("buffer_wbl2", "buffer_inv"):
                for r in R:
                    rd |= r
                rd.add(("m0", 0))
            else:
                wr |= R[0]
                for r in R[1:]:
                    rd |= r
        elif self.is_salu:
            if op.startswith(("s_cmp", "s_cbranch", "s_branch", "s_waitcnt", "s_nop", "s_barrier", "s_endpgm", "s_sleep", "s_setprio", "s_bitcmp")):
                for r in R:
                    rd |= r
            else:
                if R:
                    wr |= R[0]
                for r in R[1:]:
                    rd |= r
                if "saveexec" in op:
                    wr.add(("exec", 0))
        self.rd, self.wr = rd, wr
        self.wide_store = self.is_vmem and "store" in op and ("x4" in op or "x3" in op)
        self.states = 1
        if op == "s_nop":
            self.states = int(ops[0], 0) + 1


def need(prev, cur):
    n = 0
    vg = lambda S: {r for r in S if r[0] in "va"}
    sg = lambda S: {r for r in S if r[0] == "s" or r[0] == "vcc"}
    if prev.is_valu:
        w = vg(prev.wr)
        if cur.is_mfma and (w & cur.rd):
            n = max(n, 2)
        if prev.is_dot and (w & (cur.rd | cur.wr)) and not cur.is_salu:
            same = cur.op == prev.op
            if not (same and not (w & set().union(*[regs_of(o) for o in cur.ops[1:3]]))):
                n = max(n, 3)
        if cur.is_valu:
            if prev.is_trans and not cur.is_trans and (w & cur.rd):
                n = max(n, 1)
            if cur.is_dpp and (w & cur.rd):
                n = max(n, 2)
            if cur.is_permlane and (w & cur.rd):
                n = max(n, 2)
            if cur.op.startswith(("v_readlane", "v_readfirstlane")) and (w & cur.rd):
                n = max(n, 1)
            if ("sdwa" in prev.op or "op_sel" in prev.mods) and not prev.op.startswith("v_pk_") and (w & (cur.rd | cur.wr)):
                n = max(n, 1)
        if prev.is_trans and (cur.is_ds or cur.is_vmem) and (w & cur.rd):
            n = max(n, 1)
        ws = sg(prev.wr)
        if ws:
            if cur.is_vmem and (ws & cur.rd):
                n = max(n, 5)
            if cur.is_valu and (ws & cur.rd):
                n = max(n, 4 if cur.op.startswith(("v_readlane", "v_writelane")) else 2)
            if cur.is_salu and (ws & cur.rd or (cur.op.startswith("s_cbranch_vcc") and ("vcc", 0) in ws)):
                n = max(n, 2)
        if ("exec", 0) in prev.wr:
            if cur.is_dpp:
                n = max(n, 5)
            if cur.is_mfma or cur.is_permlane or cur.op.startswith(("v_readlane", "v_readfirstlane", "v_writelane")):
                n = max(n, 4)
    if prev.is_mfma:
        p = prev.passes
        d = prev.wr
        if cur.is_mfma:
            if d & cur.srcab:
                n = max(n, {4: 8, 8: 12}[p])
            if d & cur.srcc:
                if not (cur.srcc == d and cur.passes == p):
                    n = max(n, {4: 6, 8: 10}[p])
            elif d & cur.wr:
                n = max(n, {4: 8, 8: 12}[p])
        elif (cur.is_valu or cur.is_ds or cur.is_vmem) and (d & (cur.rd | cur.wr)):
            n = max(n, {4: 8, 8: 12}[p])
        if cur.is_valu and (prev.srcc & cur.wr):
            n = max(n, {4: 3, 8: 7}[p])
    if prev.wide_store and (prev.store_data & cur.wr):
        n = max(n, 2)
    if prev.is_ds and prev.op in ("ds_write_b128", "ds_write_b96", "ds_write2_b64") and cur.is_valu and (vg(prev.rd) & cur.wr):
        n = max(n, 1)
    if prev.is_salu and ("m0", 0) in prev.wr and cur.lds_dma:
        n = max(n, 1)
    if prev.is_salu and ("exec", 0) in prev.wr and cur.is_dpp:
        n = max(n, 1)
    return n


class Asm:
    def __init__(self):
        self.items = []
        self.hist = []
        self.nops_added = 0

    def raw(self, s):
        self.items.append(("r", s))

    def comment(self, s):
        self.items.append(("r", "    ; " + s))

    def label(self, name, flush=True):
        self.items.append(("l", name))

    def __call__(self, text):
        for line in text.strip().split("\n"):
            line = line.strip()
            if not line or line.startswith(";"):
                continue
            if line.endswith(":"):
                self.label(line[:-1])
                continue
            if line.startswith("."):
                self.raw(line)
                continue
            self.emit(line)

    def emit(self, text):
        cur = Ins(text)
        req = 0
        dist = 0
        for prev in reversed(self.hist):
            n = need(prev, cur) - dist
            req = max(req, n)
            dist += prev.states
            if dist > 20:
                break
        while req > 0:
            k = min(req, 16)
            nop = Ins(f"s_nop {k-1}")
            self.items.append(("i", nop))
            self.hist.append(nop)
            self.nops_added += 1
            req -= k
        self.items.append(("i", cur))
        self.hist.append(cur)
        if len(self.hist) > 40:
            self.hist = self.hist[-40:]
        if cur.op in ("s_branch", "s_endpgm", "s_setpc_b64"):
            self.hist = []

    def drain(self, n=13):
        dist = 0
        req = 0
        for prev in reversed(self.hist):
            worst = 0
            if prev.is_mfma:
                worst = {4: 8, 8: 12}[prev.passes]
            elif prev.is_valu:
                worst = 5
            elif prev.wide_store:
                worst = 2
            elif prev.is_salu and ("m0", 0) in prev.wr:
                worst = 1
            req = max(req, worst - dist)
            dist += prev.states
            if dist > 20:
                break
        if req > 0:
            self.emit(f"s_nop {req-1}")

    def text(self):
        out = []
        for k, v in self.items:
            if k == "i":
                out.append("    " + v.text)
            elif k == "l":
                out.append(v + ":")
            else:
                out.append(v)
        return "\n".join(out) + "\n"
```

```python
import sys, struct, math
sys.path.insert(0, "work")
from asmlib import Asm

KNAME = "recurrent_scan__ssm_conv_s4__dense_activation_gelu__prompt_kernel"

XF = 0x000000
UO = 0x280000
W2F = 0x500000
HF = 0x700000
SO = 0xD00000
FL = 0x1000000
FX = FL
FU = FL + 0x1000
FW = FL + 0x2000
FH = FL + 0x3000
FS = FL + 0x4000
STAMP = 0x1100000
WS_BYTES = 0x1200000

L_W1 = 0
L_KT = 122880
L_XS = L_KT + 3 * 4352
L_W2S = L_XS + 8 * 1344
CW_STRIDE = 21504
C_STRIDE = 4160
L_UR = 4 * C_STRIDE
L_TT = 2 * C_STRIDE
L_PB = 65536
L_ST = 131072
LDS_BYTES = 163840

def f2u(x):
    return struct.unpack("<I", struct.pack("<f", x))[0]

LOG2E = 1.4426950408889634
INV2PI = 0.15915494309189535
INV2PI_HI = struct.unpack("<f", struct.pack("<f", INV2PI))[0]
INV2PI_LO = INV2PI - INV2PI_HI

SPIN_MAX = 200000


def build(opts=None):
    o = dict(stamps=False, exact_ln=True)
    o.update(opts or {})
    a = Asm()
    LANE = "v250"
    L16 = "v251"
    SRD_WS = "s[44:47]"
    SRD_X = "s[48:51]"
    SRD_W1 = "s[52:55]"
    SRD_OUT = "s[56:59]"
    EPOCH = "s60"
    SCH = "s61"
    nstamp = [0]

    def stamp():
        if not o["stamps"]:
            return
        i = nstamp[0]
        nstamp[0] += 1
        assert i < 10
        a(f"s_memtime s[{80+2*i}:{81+2*i}]")

    pollid = [0]

    def poll(vaddr, vt, wide=1):
        i = pollid[0]
        pollid[0] += 1
        a(f"s_mov_b32 s73, 0")
        a.label(f"L_poll{i}")
        if wide == 1:
            a(f"buffer_load_dword v{vt}, {vaddr}, {SRD_WS}, 0 offen sc1")
            a("s_waitcnt vmcnt(0)")
            a(f"v_cmp_ne_u32 vcc, {EPOCH}, v{vt}")
        elif wide == 2:
            a(f"buffer_load_dwordx2 v[{vt}:{vt+1}], {vaddr}, {SRD_WS}, 0 offen sc1")
            a("s_waitcnt vmcnt(0)")
            a(f"v_xor_b32 v{vt}, {EPOCH}, v{vt}")
            a(f"v_xor_b32 v{vt+1}, {EPOCH}, v{vt+1}")
            a(f"v_or_b32 v{vt}, v{vt}, v{vt+1}")
            a(f"v_cmp_ne_u32 vcc, 0, v{vt}")
        else:
            a(f"buffer_load_dwordx4 v[{vt}:{vt+3}], {vaddr}, {SRD_WS}, 0 offen sc1")
            a("s_waitcnt vmcnt(0)")
            for k in range(4):
                a(f"v_xor_b32 v{vt+k}, {EPOCH}, v{vt+k}")
            a(f"v_or_b32 v{vt}, v{vt}, v{vt+1}")
            a(f"v_or3_b32 v{vt}, v{vt}, v{vt+2}, v{vt+3}")
            a(f"v_cmp_ne_u32 vcc, 0, v{vt}")
        a(f"s_cbranch_vccz L_poll{i}_ok")
        a("s_sleep 2")
        a("s_add_u32 s73, s73, 1")
        a(f"s_cmp_lt_u32 s73, {SPIN_MAX}")
        a(f"s_cbranch_scc1 L_poll{i}")
        a.label(f"L_poll{i}_ok")

    def set_flag(soff, vt):
        a(f"v_mov_b32 v{vt}, {EPOCH}")
        a(f"v_mov_b32 v{vt+1}, 0")
        a("s_mov_b64 exec, 1")
        a(f"buffer_store_dword v{vt}, v{vt+1}, {SRD_WS}, {soff} offen sc1")
        a("s_mov_b64 exec, -1")

    def get_epoch(vt):
        i = pollid[0]
        pollid[0] += 1
        a("s_mov_b32 s73, 0")
        a(f"v_mov_b32 v{vt+1}, 0")
        a.label(f"L_ep{i}")
        a(f"global_load_dword v{vt}, v{vt+1}, s[38:39] sc1")
        a("s_waitcnt vmcnt(0)")
        a(f"v_readfirstlane_b32 {EPOCH}, v{vt}")
        a(f"s_cmp_lg_u32 {EPOCH}, 0")
        a(f"s_cbranch_scc1 L_ep{i}_ok")
        a("s_sleep 2")
        a("s_add_u32 s73, s73, 1")
        a(f"s_cmp_lt_u32 s73, {SPIN_MAX}")
        a(f"s_cbranch_scc1 L_ep{i}")
        a.label(f"L_ep{i}_ok")

    def cmul(d, x, y):
        a(f"v_pk_mul_f32 v[{d}:{d+1}], v[{x}:{x+1}], v[{y}:{y+1}] op_sel:[0,0] op_sel_hi:[0,1]")
        a(f"v_pk_fma_f32 v[{d}:{d+1}], v[{x}:{x+1}], v[{y}:{y+1}], v[{d}:{d+1}] op_sel:[1,1,0] op_sel_hi:[1,0,1] neg_lo:[1,0,0]")

    a.label(KNAME)
    a("s_cmp_ge_u32 s2, 0x100")
    a("s_cbranch_scc1 L_end")
    stamp()
    a("s_load_dwordx16 s[8:23], s[0:1], 0")
    a("s_load_dwordx16 s[24:39], s[0:1], 64")
    a("s_load_dwordx2 s[40:41], s[0:1], 128")
    a("s_getpc_b64 s[42:43]")
    a.label("L_pc")
    a("v_lshrrev_b32 v1, 6, v0")
    a(f"v_and_b32 {LANE}, 63, v0")
    a("v_readfirstlane_b32 s3, v1")
    a("v_lshlrev_b32 v2, 7, v0")
    a("v_min_u32 v2, L_codeend-L_pc-4, v2")
    a("global_load_dword v249, v2, s[42:43]")
    a(f"v_lshlrev_b32 {L16}, 4, {LANE}")
    a("s_and_b32 s65, s2, 7")
    a("s_lshr_b32 s66, s2, 3")
    a("s_lshr_b32 s67, s65, 1")
    a("s_and_b32 s68, s65, 1")
    a("s_lshl_b32 s4, s67, 2")
    a("s_and_b32 s69, s66, 3")
    a("s_add_u32 s4, s4, s69")
    a("s_lshl_b32 s5, s68, 3")
    a("s_lshr_b32 s7, s66, 2")
    a("s_add_u32 s5, s5, s7")
    a("s_lshl_b32 s6, s4, 4")
    a("s_add_u32 s6, s6, s5")
    a("s_lshl_b32 s62, s67, 3")
    a("s_and_b32 s7, s66, 7")
    a("s_add_u32 s62, s62, s7")
    a("s_lshl_b32 s63, s68, 2")
    a("s_lshr_b32 s7, s66, 3")
    a("s_add_u32 s63, s63, s7")
    a("s_lshl_b32 s7, s65, 5")
    a("s_add_u32 s7, s7, s66")
    a("s_lshr_b32 s74, s7, 1")
    a("s_mul_i32 s74, s74, 5")
    a("s_and_b32 s7, s7, 1")
    a("s_mul_i32 s75, s7, 3")
    a("s_add_u32 s74, s74, s75")
    a("s_add_u32 s74, s74, s3")
    a("s_add_u32 s7, s7, s3")
    a("s_cmp_lt_u32 s7, 3")
    a(f"s_cselect_b32 {SCH}, s74, -1")
    a("s_mov_b32 s47, 0x20000")
    a("s_mov_b32 s51, 0x20000")
    a("s_mov_b32 s55, 0x20000")
    a("s_mov_b32 s59, 0x20000")
    a(f"s_mov_b32 s46, {WS_BYTES}")
    a(f"s_mov_b32 s50, {2048*1280}")
    a(f"s_mov_b32 s54, {640*3072}")
    a(f"s_mov_b32 s58, {2048*1280}")
    a("s_waitcnt lgkmcnt(0)")
    a("s_mov_b32 s44, s40")
    a("s_mov_b32 s45, s41")
    a("s_mov_b32 s48, s8")
    a("s_mov_b32 s49, s9")
    a("s_mov_b32 s52, s28")
    a("s_mov_b32 s53, s29")
    a("s_mov_b32 s56, s36")
    a("s_mov_b32 s57, s37")
    a("s_cmp_eq_u32 s3, 3")
    a("s_cbranch_scc1 L_role_dma")
    a("s_cmp_eq_u32 s3, 2")
    a("s_cbranch_scc1 L_role_w2")

    def param_loads():
        i = pollid[0]
        pollid[0] += 1
        a(f"s_cmp_lt_i32 {SCH}, 0")
        a(f"s_cbranch_scc1 L_nopar{i}")
        a(f"s_mul_i32 s65, {SCH}, 384")
        a(f"v_lshl_add_u32 v200, {LANE}, 2, s65")
        a(f"v_lshl_add_u32 v201, {LANE}, 1, s65")
        a(f"s_lshl_b32 s65, {SCH}, 1")
        a("v_mov_b32 v202, s65")
        for k in range(6):
            a(f"global_load_dword v{160+k}, v200, s[{10+2*k}:{11+2*k}]")
        for k in range(6):
            a(f"global_load_ushort v{166+k}, v201, s[{10+2*k}:{11+2*k}] offset:256")
        a("global_load_ushort v245, v202, s[22:23]")
        a("global_load_ushort v246, v202, s[24:25]")
        a.label(f"L_nopar{i}")

    a(f"v_and_b32 v1, 3, {LANE}")
    a(f"v_lshrrev_b32 v2, 2, {LANE}")
    a("s_lshl_b32 s65, s6, 3")
    a("s_lshl_b32 s66, s3, 2")
    a("s_add_u32 s65, s65, s66")
    a("s_mul_i32 s65, s65, 1280")
    a("v_mul_u32_u24 v3, 1280, v1")
    a("v_lshl_add_u32 v3, v2, 4, v3")
    X0 = 8
    for i in range(5):
        a(f"buffer_load_dwordx4 v[{X0+4*i}:{X0+4*i+3}], v3, {SRD_X}, s65 offen offset:{256*i}")
    a("s_or_b32 s7, s2, s3")
    a("s_cmp_lg_u32 s7, 0")
    a("s_cbranch_scc1 L_noepw")
    a("s_memrealtime s[76:77]")
    a("s_waitcnt lgkmcnt(0)")
    a("s_or_b32 s76, s76, 1")
    a("v_mov_b32 v4, s76")
    a("v_mov_b32 v5, 0")
    a("s_mov_b64 exec, 1")
    a("global_store_dword v5, v4, s[38:39] sc1")
    a("s_mov_b64 exec, -1")
    a.label("L_noepw")
    param_loads()
    a("s_mov_b32 s66, 0x3f803f80")
    a("s_mov_b32 s67, 0x00003f80")
    a("s_mov_b32 s68, 0x3f800000")
    a("v_mov_b32 v4, 0")
    a("v_mov_b32 v5, 0")
    a("v_lshlrev_b32 v6, 9, v2")
    a("v_lshl_add_u32 v6, v1, 4, v6")
    a("s_lshr_b32 s65, s6, 2")
    a("s_mul_i32 s65, s65, 40960")
    a("s_and_b32 s7, s6, 3")
    a("s_lshl_b32 s7, s7, 7")
    a("s_add_u32 s65, s65, s7")
    a("s_lshl_b32 s7, s3, 6")
    a("s_add_u32 s65, s65, s7")
    a("v_mul_u32_u24 v7, 1344, v1")
    a("v_lshl_add_u32 v7, v2, 4, v7")
    a(f"s_mul_i32 s7, s3, {4*1344}")
    a(f"s_add_u32 s7, s7, {L_XS}")
    a("v_add_u32 v7, s7, v7")
    a("s_waitcnt vmcnt(14)")
    for i in range(20):
        a(f"v_dot2_f32_bf16 v4, v{X0+i}, s66, v4")
        a(f"v_dot2_f32_bf16 v5, v{X0+i}, v{X0+i}, v5")
    a("v_add_f32_dpp v4, v4, v4 row_ror:4 row_mask:0xf bank_mask:0xf")
    a("v_add_f32_dpp v5, v5, v5 row_ror:4 row_mask:0xf bank_mask:0xf")
    a("v_add_f32_dpp v4, v4, v4 row_ror:8 row_mask:0xf bank_mask:0xf")
    a("v_add_f32_dpp v5, v5, v5 row_ror:8 row_mask:0xf bank_mask:0xf")
    for sw in ("v_permlane16_swap_b32", "v_permlane32_swap_b32"):
        a("v_mov_b32 v28, v4")
        a("v_mov_b32 v29, v5")
        a(f"{sw} v4, v28")
        a(f"{sw} v5, v29")
        a("v_add_f32 v4, v4, v28")
        a("v_add_f32 v5, v5, v29")
    a(f"v_mul_f32 v4, {f2u(1/640):#x}, v4")
    a(f"v_mul_f32 v5, {f2u(1/640):#x}, v5")
    a("v_fma_f32 v5, -v4, v4, v5")
    a("v_max_f32 v5, 0, v5")
    a("v_cvt_pk_bf16_f32 v28, -v4, v5")
    a("v_lshlrev_b32 v4, 16, v28")
    a("v_and_b32 v5, 0xffff0000, v28")
    a(f"v_add_f32 v5, {f2u(1e-5):#x}, v5")
    a("v_cvt_pk_bf16_f32 v5, v5, v5")
    a("v_and_b32 v5, 0xffff0000, v5")
    a("v_sqrt_f32 v5, v5")
    a("v_cvt_pk_bf16_f32 v5, v5, v5")
    a("v_and_b32 v5, 0xffff0000, v5")
    a("v_rcp_f32 v30, v5")
    E0 = 32
    for i in range(5):
        for k in range(4):
            a(f"v_dot2_f32_bf16 v{E0+2*k}, v{X0+4*i+k}, s67, v4")
            a(f"v_dot2_f32_bf16 v{E0+2*k+1}, v{X0+4*i+k}, s68, v4")
        if o["exact_ln"]:
            for k in range(4):
                a(f"v_cvt_pk_bf16_f32 v{E0+8+k}, v{E0+2*k}, v{E0+2*k+1}")
            for k in range(4):
                a(f"v_lshlrev_b32 v{E0+2*k}, 16, v{E0+8+k}")
                a(f"v_and_b32 v{E0+2*k+1}, 0xffff0000, v{E0+8+k}")
        for k in range(4):
            a(f"v_pk_mul_f32 v[{E0+2*k}:{E0+2*k+1}], v[{E0+2*k}:{E0+2*k+1}], v[30:31] op_sel_hi:[1,0]")
        for k in range(4):
            a(f"v_cvt_pk_bf16_f32 v{X0+4*i+k}, v{E0+2*k}, v{E0+2*k+1}")
        a(f"buffer_store_dwordx4 v[{X0+4*i}:{X0+4*i+3}], v6, {SRD_WS}, s65 offen sc1")
        a(f"ds_write_b128 v7, v[{X0+4*i}:{X0+4*i+3}] offset:{256*i}")
        if i < 4:
            a("s_add_u32 s65, s65, 8192")
    stamp()
    a(f"v_bfe_u32 v1, {LANE}, 2, 2")
    a("v_sub_u32 v1, 3, v1")
    a("v_mul_u32_u24 v1, 1344, v1")
    a(f"v_lshrrev_b32 v2, 4, {LANE}")
    a("v_lshl_add_u32 v1, v2, 5, v1")
    a(f"v_and_b32 v2, 3, {LANE}")
    a("v_lshl_add_u32 v1, v2, 3, v1")
    a("s_mul_i32 s7, s3, 640")
    a(f"s_add_u32 s7, s7, {L_XS}")
    a("v_add_u32 v1, s7, v1")
    a("s_mul_i32 s65, s6, 10240")
    a("s_mul_i32 s7, s3, 5120")
    a("s_add_u32 s65, s65, s7")
    a(f"s_add_u32 s65, s65, {UO}")
    a("s_add_u32 s66, s65, 4096")
    a("s_waitcnt lgkmcnt(0)")
    a("s_barrier")
    for n in range(5):
        a(f"ds_read_b64_tr_b16 v[{32+4*n}:{33+4*n}], v1 offset:{4*1344+128*n}")
        a(f"ds_read_b64_tr_b16 v[{34+4*n}:{35+4*n}], v1 offset:{128*n}")
    get_epoch(4)
    a("s_lshl_b32 s7, s6, 1")
    a("s_add_u32 s7, s7, s3")
    a("s_lshl_b32 s7, s7, 2")
    a(f"s_add_u32 s7, s7, {FX}")
    set_flag("s7", 4)
    a("s_waitcnt lgkmcnt(0)")
    for n in range(5):
        so, off = ("s65", 1024*n) if n < 4 else ("s66", 0)
        a(f"buffer_store_dwordx4 v[{32+4*n}:{35+4*n}], {L16}, {SRD_WS}, {so} offen offset:{off} sc1")
    a("s_lshl_b32 s7, s3, 8")
    a("s_add_u32 s7, s7, s6")
    a("s_lshl_b32 s7, s7, 2")
    a(f"s_add_u32 s79, s7, {FU}")
    a("s_branch L_kgen")

    a.label("L_role_w2")
    a("s_mov_b32 s79, -1")
    a("s_cmp_ge_u32 s2, 240")
    a("s_cbranch_scc1 L_w2_skip1")
    a("s_mul_i32 s65, s2, 1366")
    a("s_lshr_b32 s65, s65, 16")
    a("s_mul_i32 s66, s65, 48")
    a("s_sub_u32 s66, s2, s66")
    a(f"v_lshrrev_b32 v1, 4, {LANE}")
    a(f"v_and_b32 v2, 15, {LANE}")
    a("v_mul_u32_u24 v3, 1280, v1")
    a("v_lshl_add_u32 v3, v2, 4, v3")
    a(f"s_mul_i32 s67, s66, {32*1280}")
    a("s_lshl_b32 s7, s65, 8")
    a("s_add_u32 s67, s67, s7")
    a("v_add_u32 v3, s67, v3")
    for i in range(8):
        a(f"global_load_dwordx4 v[{8+4*i}:{11+4*i}], v3, s[32:33]")
        if i < 7:
            a("v_add_u32 v3, 5120, v3")
    a.label("L_w2_skip1")
    param_loads()
    a("s_cmp_ge_u32 s2, 240")
    a("s_cbranch_scc1 L_w2_skip2")
    a("v_mul_u32_u24 v3, 288, v1")
    a("v_lshl_add_u32 v3, v2, 4, v3")
    a(f"v_add_u32 v3, {L_W2S}, v3")
    a(f"v_lshrrev_b32 v4, 5, {LANE}")
    a("v_lshlrev_b32 v4, 4, v4")
    a(f"v_bfe_u32 v5, {LANE}, 2, 3")
    a("v_add_u32 v4, v4, v5")
    a("v_mul_u32_u24 v4, 288, v4")
    a(f"v_and_b32 v5, 3, {LANE}")
    a("v_lshl_add_u32 v4, v5, 3, v4")
    a(f"v_add_u32 v4, {L_W2S}, v4")
    a("s_mul_i32 s65, s2, 1366")
    a("s_lshr_b32 s65, s65, 16")
    a(f"s_mul_i32 s67, s65, {8*48*1024}")
    a("s_lshl_b32 s7, s66, 10")
    a("s_add_u32 s67, s67, s7")
    a(f"s_add_u32 s67, s67, {W2F}")
    a("s_lshl_b32 s7, s2, 2")
    a(f"s_add_u32 s79, s7, {FW}")
    a("s_waitcnt vmcnt(0)")
    for i in range(8):
        a(f"ds_write_b128 v3, v[{8+4*i}:{11+4*i}] offset:{4*288*i}")
    for k in range(8):
        a(f"ds_read_b64_tr_b16 v[{40+4*k}:{41+4*k}], v4 offset:{32*k}")
        a(f"ds_read_b64_tr_b16 v[{42+4*k}:{43+4*k}], v4 offset:{32*k+8*288}")
    for k in range(8):
        a(f"s_waitcnt lgkmcnt({min(15, 14-2*k)})")
        a(f"buffer_store_dwordx4 v[{40+4*k}:{43+4*k}], {L16}, {SRD_WS}, s67 offen sc1")
        if k < 7:
            a(f"s_add_u32 s67, s67, {48*1024}")
    a.label("L_w2_skip2")
    stamp_save = nstamp[0]
    nstamp[0] = 1
    stamp()
    nstamp[0] = stamp_save
    a("s_barrier")
    get_epoch(4)
    a("s_branch L_kgen")

    a.label("L_role_dma")
    a("s_mov_b32 s79, -1")
    for n in range(3):
        a(f"v_add_u32 v8, {64*n}, {LANE}")
        a("v_mul_u32_u24 v9, 5462, v8")
        a("v_lshrrev_b32 v9, 16, v9")
        a("v_mul_u32_u24 v10, 12, v9")
        a("v_sub_u32 v10, v8, v10")
        a("v_mul_u32_u24 v9, 3072, v9")
        a(f"v_lshl_add_u32 v{4+n}, v10, 4, v9")
        if n:
            a(f"v_subrev_u32 v{4+n}, {1024*n}, v{4+n}")
    a("s_mul_i32 s65, s69, 10")
    a("s_mul_i32 s68, s5, 192")
    a("s_mov_b32 s72, 0")
    a.label("L_dma_loop")
    a("s_mul_i32 s66, s65, 3072")
    a("s_mov_b32 m0, s66")
    a("s_lshl_b32 s67, s66, 4")
    a("s_add_u32 s67, s67, s68")
    for n in range(3):
        a(f"buffer_load_dwordx4 v{4+n}, {SRD_W1}, s67 offen offset:{1024*n} lds")
    a("s_add_u32 s65, s65, 1")
    a("s_cmp_ge_u32 s65, 40")
    a("s_cselect_b32 s65, 0, s65")
    a("s_add_u32 s72, s72, 1")
    a("s_cmp_lg_u32 s72, 20")
    a("s_cbranch_scc1 L_dma_nobar")
    stamp_save = nstamp[0]
    nstamp[0] = 1
    stamp()
    nstamp[0] = stamp_save
    a("s_barrier")
    a.label("L_dma_nobar")
    a("s_cmp_lt_u32 s72, 40")
    a("s_cbranch_scc1 L_dma_loop")
    get_epoch(4)

    a.label("L_kgen")
    a(f"s_cmp_lt_i32 {SCH}, 0")
    a("s_cbranch_scc1 L_kgen_done")
    for i in range(12):
        a(f"v_accvgpr_write_b32 a{240+i}, 0")
    a("s_mul_i32 s7, s3, 4352")
    a(f"s_add_u32 s7, s7, {L_KT}")
    a(f"v_lshl_add_u32 v240, {LANE}, 2, s7")
    for i in range(1, 4):
        a(f"v_add_u32 v{240+i}, {4*272*i}, v240")
    a(f"v_and_b32 v200, 15, {LANE}")
    a("v_mul_u32_u24 v200, 272, v200")
    a(f"v_lshrrev_b32 v201, 4, {LANE}")
    a("v_lshl_add_u32 v200, v201, 4, v200")
    a("v_add_u32 v244, s7, v200")
    a("v_lshlrev_b32 v200, 16, v245")
    a(f"s_mov_b32 s65, {f2u(LOG2E):#x}")
    lo = LOG2E - struct.unpack("<f", struct.pack("<f", LOG2E))[0]
    a("v_mul_f32 v201, s65, v200")
    a("v_fma_f32 v202, v200, s65, -v201")
    a(f"v_fmac_f32 v202, {f2u(lo):#x}, v200")
    a("v_rndne_f32 v203, v201")
    a("v_sub_f32 v201, v201, v203")
    a("v_add_f32 v201, v201, v202")
    a("v_exp_f32 v201, v201")
    a("v_cvt_i32_f32 v203, v203")
    a("v_ldexp_f32 v201, v201, v203")
    a("v_cvt_pk_bf16_f32 v201, v201, v201")
    a("v_and_b32 v201, 0xffff0000, v201")
    a("v_readfirstlane_b32 s64, v201")
    a(f"s_mov_b32 s66, {f2u(INV2PI_HI):#x}")
    a("s_mov_b32 s72, 0")
    a.label("L_kgen_loop")
    P = 172
    W1_, W2_, W4_, W8_, W128_ = 178, 180, 182, 184, 186
    G0, G1_, XA, XB, YA, YB = 188, 190, 192, 194, 196, 198
    T = 200
    LO, HI = 208, 224
    for k in range(6):
        a(f"v_lshlrev_b32 v{P+k}, 16, v{160+k}")
    for k in range(6):
        a(f"v_alignbit_b32 v{160+k}, v{166+k}, v{160+k}, 16")
    for k in range(4):
        a(f"v_mul_f32 v{P+k}, s64, v{P+k}")
    cmul(G0, P+4, P+2)
    a(f"v_mul_f32 v{T}, s65, v{P}")
    a(f"v_mul_f32 v{T+1}, s66, v{P+1}")
    a(f"v_fma_f32 v{T+2}, v{P+1}, s66, -v{T+1}")
    a(f"v_fmac_f32 v{T+2}, {f2u(INV2PI_LO):#x}, v{P+1}")
    for (e, W) in ((8.0, W8_), (1.0, W1_), (128.0, W128_)):
        if e == 1.0:
            a(f"v_fract_f32 v{T+3}, v{T+1}")
            a(f"v_add_f32 v{T+3}, v{T+3}, v{T+2}")
            a(f"v_exp_f32 v{T+4}, v{T}")
        else:
            a(f"v_mul_f32 v{T+3}, {f2u(e):#x}, v{T+1}")
            a(f"v_mul_f32 v{T+4}, {f2u(e):#x}, v{T}")
            a(f"v_fract_f32 v{T+3}, v{T+3}")
            a(f"v_fmac_f32 v{T+3}, {f2u(e):#x}, v{T+2}")
            a(f"v_exp_f32 v{T+4}, v{T+4}")
        a(f"v_cos_f32 v{W}, v{T+3}")
        a(f"v_sin_f32 v{W+1}, v{T+3}")
        a(f"v_pk_mul_f32 v[{W}:{W+1}], v[{W}:{W+1}], v[{T+4}:{T+5}] op_sel_hi:[1,0]")

    rowbuf = {}

    def put(row, src, neg):
        t = T + 6 + (row & 1)
        if src is None:
            a(f"v_mov_b32 v{t}, 0x3f80")
        else:
            a(f"v_cvt_pk_bf16_f32 v{t}, v{src}, {'-' if neg else ''}v{src+1}")
        if row & 1:
            b = 240 + (row >> 2)
            o0 = 68 * ((row - 1) & 3)
            a(f"ds_write2_b32 v{b}, v{T+6}, v{T+7} offset0:{o0} offset1:{o0+68}")

    def read_frags(dst):
        for j in range(4):
            a(f"ds_read_b128 v[{dst+4*j}:{dst+4*j+3}], v244 offset:{64*j}")

    def mfmas(tile, nwait):
        a(f"s_waitcnt lgkmcnt({nwait})")
        acc = f"a[{240+4*tile}:{243+4*tile}]"
        for j in range(4):
            h = f"v[{HI+4*j}:{HI+4*j+3}]"
            l = f"v[{LO+4*j}:{LO+4*j+3}]"
            if tile == 2:
                a(f"v_mfma_f32_16x16x32_bf16 {acc}, {l}, {h}, {acc}")
            else:
                a(f"v_mfma_f32_16x16x32_bf16 {acc}, {h}, {l}, {acc}")

    put(0, None, False)
    put(1, W8_, False)
    cur, nxt = W8_, XA
    for q in range(2, 16):
        cmul(nxt, cur, W8_)
        put(q, nxt, False)
        cur, nxt = nxt, (XB if nxt == XA else XA)
    read_frags(LO)
    cmul(G1_, G0, W128_)
    for half, G in ((0, G0), (1, G1_)):
        put(8*half, G, True)
        cur, nxt = G, XA
        for e in range(1, 8):
            cmul(nxt, cur, W1_)
            put(8*half + e, nxt, True)
            cur, nxt = nxt, (XB if nxt == XA else XA)
    read_frags(HI)
    cmul(W2_, W1_, W1_)
    cmul(W4_, W2_, W2_)
    cmul(G0, G1_, W128_)
    cmul(G1_, G0, W128_)
    mfmas(0, 0)
    for half, G in ((0, G0), (1, G1_)):
        put(4*half, G, True)
        cur, nxt = G, XA
        for e in range(1, 4):
            cmul(nxt, cur, W2_)
            put(4*half + e, nxt, True)
            cur, nxt = nxt, (XB if nxt == XA else XA)
    gc, gn = G1_, G0
    for p in range(4):
        cmul(gn, gc, W128_)
        gc, gn = gn, gc
        put(8 + 2*p, gc, True)
        cmul(XA, gc, W4_)
        put(9 + 2*p, XA, True)
    read_frags(HI)
    first = True
    for p in range(9):
        cmul(gn, gc, W128_)
        gc, gn = gn, gc
        if p == 1:
            mfmas(1, 0)
        put(p, gc, True)
    put(9, gc, True)
    read_frags(HI)
    a("s_cmp_lg_u32 s72, 0")
    a("s_cbranch_scc1 L_kg_noflag")
    a("s_cmp_eq_u32 s79, -1")
    a("s_cbranch_scc1 L_kg_noflag")
    a("s_waitcnt vmcnt(0)")
    set_flag("s79", T)
    a("s_mov_b32 s79, -1")
    a.label("L_kg_noflag")
    mfmas(2, 0)
    a("s_add_u32 s72, s72, 1")
    a("s_cmp_lt_u32 s72, 3")
    a.drain()
    a("s_cbranch_scc1 L_kgen_loop")
    a.label("L_kgen_done")
    a("s_cmp_eq_u32 s79, -1")
    a("s_cbranch_scc1 L_kg_noflag2")
    a("s_waitcnt vmcnt(0)")
    set_flag("s79", 200)
    a.label("L_kg_noflag2")
    stamp()

    a(f"v_and_b32 v200, 31, {LANE}")
    a("s_mul_i32 s7, s5, 192")
    a("v_lshl_add_u32 v200, v200, 1, s7")
    WB = 208
    for t in range(3):
        a(f"global_load_ushort v{WB+12+4*t}, v200, s[30:31] offset:{64*t}")
    a("s_lshl_b32 s7, s4, 4")
    a("s_lshl_b32 s65, s3, 2")
    a("s_add_u32 s7, s7, s65")
    a("s_lshl_b32 s7, s7, 3")
    a(f"s_add_u32 s7, s7, {FX}")
    a(f"v_and_b32 v200, 7, {LANE}")
    a("v_lshl_add_u32 v200, v200, 2, s7")
    poll("v200", 201)
    a("s_lshl_b32 s65, s4, 2")
    a("s_add_u32 s65, s65, s3")
    a("s_mul_i32 s65, s65, 40960")
    for ks in range(40):
        a(f"buffer_load_dwordx4 v[{4*ks}:{4*ks+3}], {L16}, {SRD_WS}, s65 offen offset:{1024*(ks&3)} sc1")
        if (ks & 3) == 3 and ks < 39:
            a("s_add_u32 s65, s65, 4096")
    stamp()
    for t in range(3):
        for k in range(1, 4):
            a(f"v_mov_b32 v{WB+12+4*t+k}, 0")
    a(f"v_cmp_gt_u32 vcc, 32, {LANE}")
    a("v_mov_b32 v232, 0x3f80")
    a("v_cndmask_b32 v232, 0, v232, vcc")
    a("v_mov_b32 v233, 0")
    a("v_mov_b32 v234, 0")
    a("v_mov_b32 v235, 0")
    a(f"v_lshrrev_b32 v200, 5, {LANE}")
    a("v_lshlrev_b32 v200, 3, v200")
    a(f"v_bfe_u32 v201, {LANE}, 2, 2")
    a("v_add_u32 v200, v200, v201")
    a("v_mul_u32_u24 v200, 192, v200")
    a(f"v_bfe_u32 v201, {LANE}, 4, 1")
    a("v_lshl_add_u32 v200, v201, 5, v200")
    a(f"v_and_b32 v201, 3, {LANE}")
    a("v_lshl_add_u32 v236, v201, 3, v200")
    a(f"v_add_u32 v237, {20*3072}, v236")
    ACC = 160
    for t in range(3):
        a(f"v_mfma_f32_32x32x16_bf16 v[{ACC+16*t}:{ACC+16*t+15}], v[{WB+12+4*t}:{WB+15+4*t}], v[232:235], 0")
    a("s_barrier")

    def w1_reads(ks):
        buf = WB + 12 * (ks & 1)
        base = "v236" if ks < 20 else "v237"
        off = (ks % 20) * 3072
        for t in range(3):
            a(f"ds_read_b64_tr_b16 v[{buf+4*t}:{buf+4*t+1}], {base} offset:{off+64*t}")
            a(f"ds_read_b64_tr_b16 v[{buf+4*t+2}:{buf+4*t+3}], {base} offset:{off+64*t+768}")

    w1_reads(0)
    for ks in range(40):
        if ks < 39:
            w1_reads(ks + 1)
            a(f"s_waitcnt vmcnt({39-ks}) lgkmcnt(6)")
        else:
            a("s_waitcnt vmcnt(0) lgkmcnt(0)")
        buf = WB + 12 * (ks & 1)
        for t in range(3):
            acc = f"v[{ACC+16*t}:{ACC+16*t+15}]"
            a(f"v_mfma_f32_32x32x16_bf16 {acc}, v[{buf+4*t}:{buf+4*t+3}], v[{4*ks}:{4*ks+3}], {acc}")
    a("s_barrier")
    stamp()

    a(f"s_cmp_lt_i32 {SCH}, 0")
    a("s_cbranch_scc1 L_nou")
    a(f"s_cmp_ge_u32 {SCH}, 320")
    a("s_cselect_b32 s7, 0x400, 0")
    a(f"s_add_u32 s7, s7, {FU}")
    a(f"v_add_u32 v0, s7, {L16}")
    poll("v0", 4, wide=4)
    a(f"v_mul_u32_u24 v0, 10240, {LANE}")
    a(f"s_lshl_b32 s65, {SCH}, 4")
    a(f"s_add_u32 s65, s65, {UO}")
    UREG = 128
    for it in range(4):
        a(f"buffer_load_dwordx4 v[{UREG+4*it}:{UREG+4*it+3}], v0, {SRD_WS}, s65 offen sc1")
        if it < 3:
            a(f"s_add_u32 s65, s65, {64*10240}")
    a.label("L_nou")

    k0 = -2.0 * 0.7978845608028654 * LOG2E
    k1 = k0 * 0.044715
    a(f"v_mov_b32 v0, {f2u(k0):#x}")
    a(f"v_mov_b32 v2, {f2u(k1):#x}")
    a("v_mov_b32 v4, 1.0")
    a(f"v_bfe_u32 v6, {LANE}, 4, 1")
    a("v_mul_u32_u24 v6, 49152, v6")
    a(f"v_lshrrev_b32 v7, 5, {LANE}")
    a("v_lshl_add_u32 v6, v7, 8, v6")
    a(f"v_and_b32 v7, 15, {LANE}")
    a("v_lshl_add_u32 v6, v7, 4, v6")
    a("s_lshl_b32 s65, s4, 3")
    a("s_lshl_b32 s7, s3, 1")
    a("s_add_u32 s65, s65, s7")
    a("s_mul_i32 s65, s65, 49152")
    a("s_mul_i32 s7, s5, 3072")
    a("s_add_u32 s65, s65, s7")
    a(f"s_add_u32 s65, s65, {HF}")
    for t in range(3):
        for ch in range(2):
            base = ACC + 16 * t + 8 * ch
            TM = 8 + 16 * ch
            for k in range(4):
                x = f"v[{base+2*k}:{base+2*k+1}]"
                tm = f"v[{TM+2*k}:{TM+2*k+1}]"
                a(f"v_pk_mul_f32 {tm}, {x}, {x}")
            for k in range(4):
                tm = f"v[{TM+2*k}:{TM+2*k+1}]"
                a(f"v_pk_fma_f32 {tm}, {tm}, v[2:3], v[0:1] op_sel_hi:[1,0,0]")
            for k in range(4):
                x = f"v[{base+2*k}:{base+2*k+1}]"
                tm = f"v[{TM+2*k}:{TM+2*k+1}]"
                a(f"v_pk_mul_f32 {tm}, {tm}, {x}")
            for k in range(8):
                a(f"v_exp_f32 v{TM+k}, v{TM+k}")
            for k in range(4):
                tm = f"v[{TM+2*k}:{TM+2*k+1}]"
                a(f"v_pk_add_f32 {tm}, {tm}, v[4:5] op_sel_hi:[1,0]")
            for k in range(8):
                a(f"v_rcp_f32 v{TM+k}, v{TM+k}")
            for k in range(4):
                x = f"v[{base+2*k}:{base+2*k+1}]"
                tm = f"v[{TM+2*k}:{TM+2*k+1}]"
                a(f"v_pk_mul_f32 {tm}, {tm}, {x}")
            for k in range(4):
                a(f"v_cvt_pk_bf16_f32 v{TM+8+k}, v{TM+2*k}, v{TM+2*k+1}")
            a(f"buffer_store_dwordx4 v[{TM+8}:{TM+11}], v6, {SRD_WS}, s65 offen offset:{1024*t+512*ch} sc1")
    stamp()
    a("s_lshl_b32 s7, s4, 6")
    a("s_lshl_b32 s65, s3, 4")
    a("s_add_u32 s7, s7, s65")
    a("s_add_u32 s7, s7, s5")
    a("s_lshl_b32 s7, s7, 2")
    a(f"s_add_u32 s79, s7, {FH}")
    a("s_mul_i32 s65, s63, 5")
    a("s_lshr_b32 s66, s65, 3")
    a("s_add_u32 s67, s65, 4")
    a("s_lshr_b32 s67, s67, 3")
    a("s_mul_i32 s66, s66, 192")
    a("s_mul_i32 s67, s67, 192")
    a(f"v_and_b32 v0, 15, {LANE}")
    a("v_min_u32 v0, 11, v0")
    a("v_lshlrev_b32 v0, 2, v0")
    a("v_mov_b32 v1, s66")
    a("v_mov_b32 v2, s67")
    a(f"v_cmp_lt_u32 vcc, 31, {LANE}")
    a("v_cndmask_b32 v1, v1, v2, vcc")
    a("s_mul_i32 s7, s3, 48")
    a(f"s_add_u32 s7, s7, {FW}")
    a("v_add3_u32 v0, v0, v1, s7")
    a("s_waitcnt vmcnt(0)")
    set_flag("s79", 4)
    poll("v0", 4)
    a("s_mul_i32 s65, s63, 240")
    a("s_mul_i32 s7, s3, 12")
    a("s_add_u32 s65, s65, s7")
    a("s_lshl_b32 s65, s65, 10")
    a(f"s_add_u32 s65, s65, {W2F}")
    for k in range(5):
        a(f"s_add_u32 s{66+k}, s65, {k*48*1024}")
    for i in range(12):
        for k in range(5):
            r = (i * 5 + k) * 4
            a(f"buffer_load_dwordx4 a[{r}:{r+3}], {L16}, {SRD_WS}, s{66+k} offen offset:{1024*(i&3)} sc1")
        if (i & 3) == 3 and i < 11:
            for k in range(5):
                a(f"s_add_u32 s{66+k}, s{66+k}, 4096")

    a(f"s_cmp_lt_i32 {SCH}, 0")
    a("s_cbranch_scc1 L_conv_done")
    a(f"s_mul_i32 s74, s3, {CW_STRIDE}")
    a(f"v_and_b32 v0, 15, {LANE}")
    a(f"v_lshrrev_b32 v1, 4, {LANE}")
    for i in range(12):
        a(f"v_accvgpr_read_b32 v{8+i}, a{240+i}")
    for i in range(6):
        a(f"v_cvt_pk_bf16_f32 v{20+i}, v{8+2*i}, v{9+2*i}")
    a("v_and_b32 v2, 1, v1")
    a("v_lshlrev_b32 v2, 3, v2")
    a("v_lshl_add_u32 v2, v0, 4, v2")
    a("v_lshrrev_b32 v3, 1, v1")
    a("v_lshl_add_u32 v2, v3, 8, v2")
    a("v_add_u32 v2, s74, v2")
    a("ds_write_b64 v2, v[20:21] offset:32")
    a("v_lshlrev_b32 v2, 7, v1")
    a("v_add_u32 v2, s74, v2")
    a("v_lshl_add_u32 v4, v0, 3, v2")
    a("v_lshl_add_u32 v5, v0, 2, v2")
    a(f"v_cmp_lt_u32 vcc, 31, {LANE}")
    a("v_cndmask_b32 v4, v4, v5, vcc")
    a("v_cndmask_b32 v5, 4, 64, vcc" if False else "v_mov_b32 v5, 64")
    a("v_cndmask_b32 v5, 4, v5, vcc")
    a("v_add_u32 v5, v4, v5")
    a(f"ds_write_b32 v4, v22 offset:{L_TT}")
    a(f"ds_write_b32 v5, v23 offset:{L_TT}")
    a("v_lshlrev_b32 v2, 5, v0")
    a("v_lshl_add_u32 v2, v1, 3, v2")
    a("v_add_u32 v2, s74, v2")
    a(f"ds_write_b64 v2, v[24:25] offset:{L_TT+512}")
    for k in range(4):
        a(f"v_mov_b32 v{28+k}, 0")
    a(f"v_add_u32 v2, s74, {L16}")
    a("s_mov_b64 exec, 3")
    a("ds_write_b128 v2, v[28:31]")
    a("s_mov_b64 exec, 0x3fffffff")
    a(f"ds_write_b128 v2, v[28:31] offset:{L_UR+4096}")
    a("s_mov_b64 exec, -1")
    a(f"v_lshl_add_u32 v3, {LANE}, 2, s74")
    a(f"v_add_u32 v3, {L_TT}, v3")
    a("ds_read2_b32 v[32:33], v3 offset0:0 offset1:1")
    a("ds_read2_b32 v[34:35], v3 offset0:64 offset1:65")
    a("ds_read2_b32 v[36:37], v3 offset0:128 offset1:129")
    a("s_mov_b32 s65, 0x01000100")
    a("s_mov_b32 s66, 0x03020302")
    a(f"v_lshl_add_u32 v4, {LANE}, 3, s74")
    a(f"v_lshl_add_u32 v5, {LANE}, 5, s74")
    a("s_waitcnt lgkmcnt(2)")
    a("v_perm_b32 v40, v32, v32, s65")
    a("v_alignbit_b32 v41, v33, v32, 16")
    a(f"ds_write_b64 v4, v[40:41] offset:{32+512}")
    a("s_waitcnt lgkmcnt(2)")
    a("v_perm_b32 v44, v34, v34, s65")
    a("v_mov_b32 v45, v34")
    a("v_perm_b32 v46, v34, v34, s66")
    a("v_perm_b32 v47, v35, v35, s65")
    a(f"ds_write_b128 v2, v[44:47] offset:{32+1024}")
    a("s_waitcnt lgkmcnt(2)")
    a("v_perm_b32 v48, v36, v36, s65")
    a("v_mov_b32 v49, v48")
    a("v_mov_b32 v50, v36")
    a("v_perm_b32 v51, v36, v36, s66")
    a("v_mov_b32 v52, v51")
    a("v_mov_b32 v53, v51")
    a("v_perm_b32 v54, v37, v37, s65")
    a("v_mov_b32 v55, v54")
    a(f"ds_write_b128 v5, v[48:51] offset:{32+2048}")
    a(f"ds_write_b128 v5, v[52:55] offset:{32+2048+16}")
    D0 = 56
    for it in range(4):
        d = D0 + 6 * it
        a(f"ds_read_b64 v[{d}:{d+1}], v2 offset:{24+1024*it}")
        a(f"ds_read_b128 v[{d+2}:{d+5}], v2 offset:{32+1024*it}")
    a("s_mov_b64 exec, 3")
    for sg in range(1, 4):
        a(f"ds_write_b128 v2, v[28:31] offset:{sg*C_STRIDE}")
    a("s_mov_b64 exec, -1")
    for it in range(4):
        d = D0 + 6 * it
        O = 80 + 12 * (it & 1)
        a(f"s_waitcnt lgkmcnt({min(15, 3 + 2*(3-it) + 3*it)})")
        for k in range(4):
            a(f"v_alignbit_b32 v{O+k}, v{d+k+1}, v{d+k}, 16")
        a(f"v_pk_mov_b32 v[{O+4}:{O+5}], v[{d}:{d+1}], v[{d+2}:{d+3}] op_sel:[1,0]")
        a(f"v_pk_mov_b32 v[{O+6}:{O+7}], v[{d+2}:{d+3}], v[{d+4}:{d+5}] op_sel:[1,0]")
        for k in range(4):
            a(f"v_alignbit_b32 v{O+8+k}, v{d+k+2}, v{d+k+1}, 16")
        for sg in range(1, 4):
            a(f"ds_write_b128 v2, v[{O+4*(sg-1)}:{O+4*(sg-1)+3}] offset:{sg*C_STRIDE+32+1024*it}")
    a(f"v_sub_u32 v3, s74, {L16}")
    a(f"v_add_u32 v3, {L_UR+1008}, v3")
    for it in range(4):
        a(f"ds_write_b128 v3, v[{UREG+4*it}:{UREG+4*it+3}] offset:{3072-1024*it}")
    a("v_add_u32 v4, 1, v0")
    a("v_and_b32 v5, 3, v4")
    a(f"v_mul_u32_u24 v6, {C_STRIDE}, v5")
    a("v_min_u32 v5, 1, v5")
    a("v_lshl_add_u32 v6, v5, 3, v6")
    a("v_lshrrev_b32 v4, 2, v4")
    a("v_lshl_add_u32 v6, v4, 3, v6")
    a("v_lshl_add_u32 v6, v1, 4, v6")
    a("v_add_u32 v6, s74, v6")
    a("v_lshlrev_b32 v7, 5, v0")
    a("v_sub_u32 v7, s74, v7")
    a("v_lshl_add_u32 v7, v1, 4, v7")
    a(f"v_add_u32 v7, {L_UR+480}, v7")
    CA, TF, WF = 8, 40, 72
    for i in range(32):
        a(f"v_mov_b32 v{CA+i}, 0")

    def rdT(m):
        a(f"ds_read_b64 v[{TF+4*m}:{TF+4*m+1}], v6 offset:{512*m}")
        a(f"ds_read_b64 v[{TF+4*m+2}:{TF+4*m+3}], v6 offset:{512*m+8}")

    def rdW(c):
        a(f"ds_read_b128 v[{WF+4*c}:{WF+4*c+3}], v7 offset:{512*(7-c)}")

    a("s_waitcnt lgkmcnt(0)")
    stamp()
    for m in range(8):
        rdT(m)
        rdW(7 - m)
    a("s_mov_b32 s72, 0")
    a.label("L_conv_loop")
    a("v_add_u32 v6, 64, v6")
    a("v_add_u32 v7, 64, v7")
    for m in range(8):
        cs = list(range(7 - m, -1, -1))
        for c in cs:
            if m == 0:
                a(f"s_waitcnt lgkmcnt({min(15, 3*c)})")
            i = c + m
            acc = f"v[{CA+4*i}:{CA+4*i+3}]"
            a(f"v_mfma_f32_16x16x32_bf16 {acc}, v[{TF+4*m}:{TF+4*m+3}], v[{WF+4*c}:{WF+4*c+3}], {acc}")
        rdT(m)
        rdW(7 - m)
    a("s_add_u32 s72, s72, 1")
    a("s_cmp_lt_u32 s72, 8")
    a("s_cbranch_scc1 L_conv_loop")
    a("v_lshlrev_b32 v2, 5, v0")
    a("v_lshl_add_u32 v2, v1, 3, v2")
    a("v_sub_u32 v3, s74, v2")
    a(f"v_add_u32 v3, {L_UR+504}, v3")
    a("s_waitcnt lgkmcnt(0)")
    for i in range(8):
        a(f"ds_read_b64 v[{TF+2*i}:{TF+2*i+1}], v3 offset:{3584-512*i}")
    a("v_readfirstlane_b32 s65, v246")
    a("s_lshl_b32 s66, s65, 16")
    a(f"s_lshl_b32 s67, {SCH}, 12")
    a(f"s_add_u32 s67, s67, {SO}")
    for i in range(8):
        a(f"s_waitcnt lgkmcnt({7-i})")
        u0, u1 = TF + 2*i, TF + 2*i + 1
        c = CA + 4 * i
        a(f"v_dot2_f32_bf16 v{c}, v{u1}, s66, v{c}")
        a(f"v_dot2_f32_bf16 v{c+1}, v{u1}, s65, v{c+1}")
        a(f"v_dot2_f32_bf16 v{c+2}, v{u0}, s66, v{c+2}")
        a(f"v_dot2_f32_bf16 v{c+3}, v{u0}, s65, v{c+3}")
    for i in range(8):
        c = CA + 4 * i
        a(f"v_cvt_pk_bf16_f32 v{WF+2*i}, v{c}, v{c+1}")
        a(f"v_cvt_pk_bf16_f32 v{WF+2*i+1}, v{c+2}, v{c+3}")
        a(f"buffer_store_dwordx2 v[{WF+2*i}:{WF+2*i+1}], v2, {SRD_WS}, s67 offen offset:{512*i} sc1")
    a(f"s_lshl_b32 s7, {SCH}, 2")
    a(f"s_add_u32 s7, s7, {FS}")
    a("s_waitcnt vmcnt(0)")
    set_flag("s7", 4)
    a.label("L_conv_done")
    stamp()

    a("s_lshr_b32 s7, s62, 1")
    a("s_lshl_b32 s7, s7, 6")
    a("s_and_b32 s65, s62, 1")
    a("s_lshl_b32 s65, s65, 5")
    a("s_add_u32 s7, s7, s65")
    a("s_lshl_b32 s65, s3, 2")
    a("s_add_u32 s7, s7, s65")
    a("s_lshl_b32 s7, s7, 2")
    a(f"s_add_u32 s7, s7, {FH}")
    a(f"v_and_b32 v232, 3, {LANE}")
    a(f"v_bfe_u32 v233, {LANE}, 2, 1")
    a("v_lshl_add_u32 v232, v233, 4, v232")
    a("v_lshl_add_u32 v232, v232, 2, s7")
    poll("v232", 234)
    a("s_mul_i32 s66, s3, 12288")
    a(f"s_add_u32 s66, s66, {HF}")
    for i in range(4):
        a(f"s_add_u32 s7, s3, {1+i}")
        a("s_and_b32 s7, s7, 3")
        if i < 3:
            a(f"s_mul_i32 s{67+i}, s7, {3*5120}")
        a("s_lshl_b32 s65, s62, 2")
        a("s_add_u32 s65, s65, s7")
        a("s_mul_i32 s65, s65, 49152")
        a("s_add_u32 s65, s65, s66")
        for k in range(12):
            r = (i * 12 + k) * 4
            a(f"buffer_load_dwordx4 v[{r}:{r+3}], {L16}, {SRD_WS}, s65 offen offset:{1024*(k&3)} sc1")
            if (k & 3) == 3 and k < 11:
                a("s_add_u32 s65, s65, 4096")
    a(f"v_and_b32 v232, 15, {LANE}")
    a(f"v_lshrrev_b32 v233, 4, {LANE}")
    a("v_mul_u32_u24 v234, 1280, v232")
    a("v_lshl_add_u32 v234, v233, 3, v234")
    a("s_lshl_b32 s65, s62, 2")
    a("s_add_u32 s65, s65, s3")
    a(f"s_mul_i32 s65, s65, {16*1280}")
    a("s_mul_i32 s7, s63, 160")
    a("s_add_u32 s75, s65, s7")
    a("v_lshl_add_u32 v235, v233, 3, s7")
    GA = 192
    for i in range(4):
        acc0 = GA + 20 * (i & 1)
        for k in range(12):
            n_later = 47 - (i * 12 + k)
            a(f"s_waitcnt vmcnt({n_later})")
            h = (i * 12 + k) * 4
            for dt in range(5):
                w = (k * 5 + dt) * 4
                acc = f"v[{acc0+4*dt}:{acc0+4*dt+3}]"
                c = acc if k else "0"
                a(f"v_mfma_f32_16x16x32_bf16 {acc}, a[{w}:{w+3}], v[{h}:{h+3}], {c}")
            if i > 0 and k == 1:
                pa = GA + 20 * ((i - 1) & 1)
                a(f"v_add_u32 v236, s{67+i-1}, {L16}")
                for dt in range(5):
                    a(f"ds_write_b128 v236, v[{pa+4*dt}:{pa+4*dt+3}] offset:{L_PB - 65536 + (i-1)*5120 + 1024*dt}" if False else
                      f"ds_write_b128 v236, v[{pa+4*dt}:{pa+4*dt+3}] offset:{(i-1)*5120 + 1024*dt}")
            if i == 0 and k == 0:
                for q in range(3):
                    a(f"s_add_u32 s{67+q}, s{67+q}, {L_PB}")
    stamp()
    XR = 0
    for dt in range(5):
        a(f"buffer_load_dwordx2 v[{XR+2*dt}:{XR+2*dt+1}], v234, {SRD_X}, s75 offen offset:{32*dt}")
    for dt in range(5):
        a(f"global_load_dwordx2 v[{XR+10+2*dt}:{XR+11+2*dt}], v235, s[34:35] offset:{32*dt}")
    a(f"v_min_u32 v20, 39, {LANE}")
    a("s_mul_i32 s7, s63, 320")
    a(f"s_add_u32 s7, s7, {FS}")
    a("v_lshl_add_u32 v20, v20, 3, s7")
    poll("v20", 22, wide=2)
    a(f"v_lshrrev_b32 v20, 3, {LANE}")
    a("s_lshl_b32 s7, s3, 3")
    a("v_add_u32 v20, s7, v20")
    a(f"v_and_b32 v21, 7, {LANE}")
    a("v_lshlrev_b32 v22, 12, v20")
    a("v_lshl_add_u32 v22, v21, 4, v22")
    a("v_mul_u32_u24 v23, 160, v20")
    a("v_lshl_add_u32 v23, v21, 4, v23")
    a(f"v_add_u32 v23, {L_ST}, v23")
    a(f"s_mul_i32 s65, s63, {80*4096}")
    a("s_lshl_b32 s7, s62, 7")
    a("s_add_u32 s65, s65, s7")
    a(f"s_add_u32 s65, s65, {SO}")
    a(f"buffer_load_dwordx4 v[24:27], v22, {SRD_WS}, s65 offen sc1")
    a(f"s_add_u32 s65, s65, {32*4096}")
    a(f"buffer_load_dwordx4 v[28:31], v22, {SRD_WS}, s65 offen sc1")
    a("s_cmp_ge_u32 s3, 2")
    a("s_cbranch_scc1 L_s2")
    a(f"s_add_u32 s65, s65, {32*4096}")
    a(f"buffer_load_dwordx4 v[32:35], v22, {SRD_WS}, s65 offen sc1")
    a("s_waitcnt vmcnt(0)")
    a(f"ds_write_b128 v23, v[32:35] offset:{64*160}")
    a.label("L_s2")
    a("s_waitcnt vmcnt(0)")
    a("ds_write_b128 v23, v[24:27]")
    a(f"ds_write_b128 v23, v[28:31] offset:{32*160}")
    a(f"s_mul_i32 s7, s3, {3*5120}")
    a(f"s_add_u32 s7, s7, {L_PB}")
    a(f"v_add_u32 v20, s7, {L16}")
    a(f"v_lshrrev_b32 v21, 2, {LANE}")
    a("v_mul_u32_u24 v21, 160, v21")
    a(f"v_and_b32 v22, 3, {LANE}")
    a("v_lshl_add_u32 v21, v22, 3, v21")
    a("s_lshl_b32 s7, s3, 5")
    a(f"s_add_u32 s7, s7, {L_ST}")
    a("v_add_u32 v21, s7, v21")
    a("s_waitcnt lgkmcnt(0)")
    a("s_barrier")
    PR = 40
    for dt in range(5):
        for sl in range(3):
            r = PR + (dt * 3 + sl) * 4
            a(f"ds_read_b128 v[{r}:{r+3}], v20 offset:{sl*5120+1024*dt}")
    SR = 100
    OWN = GA + 20
    a(f"v_mov_b32 v24, {f2u(-LOG2E):#x}")
    a("v_mov_b32 v26, 1.0")
    for dt in range(5):
        a(f"s_waitcnt lgkmcnt({min(15, 12-3*dt + dt)})")
        a(f"ds_read_b64_tr_b16 v[{SR+2*dt}:{SR+2*dt+1}], v21 offset:{16*160*dt}")
        acc = OWN + 4 * dt
        for sl in range(3):
            r = PR + (dt * 3 + sl) * 4
            for hh in range(2):
                a(f"v_pk_add_f32 v[{acc+2*hh}:{acc+2*hh+1}], v[{acc+2*hh}:{acc+2*hh+1}], v[{r+2*hh}:{r+2*hh+1}]")
    a("s_waitcnt lgkmcnt(0)")
    for dt in range(5):
        acc = OWN + 4 * dt
        t = 112 + 16 * (dt & 1)
        b = XR + 10 + 2 * dt
        x = XR + 2 * dt
        s = SR + 2 * dt
        for hh in range(2):
            a(f"v_lshlrev_b32 v{t+2*hh}, 16, v{b+hh}")
            a(f"v_and_b32 v{t+2*hh+1}, 0xffff0000, v{b+hh}")
        for hh in range(2):
            a(f"v_pk_add_f32 v[{acc+2*hh}:{acc+2*hh+1}], v[{acc+2*hh}:{acc+2*hh+1}], v[{t+2*hh}:{t+2*hh+1}]")
        for hh in range(2):
            a(f"v_pk_mul_f32 v[{t+2*hh}:{t+2*hh+1}], v[{acc+2*hh}:{acc+2*hh+1}], v[24:25] op_sel_hi:[1,0]")
        for k in range(4):
            a(f"v_exp_f32 v{t+k}, v{t+k}")
        for hh in range(2):
            a(f"v_lshlrev_b32 v{t+4+2*hh}, 16, v{s+hh}")
            a(f"v_and_b32 v{t+5+2*hh}, 0xffff0000, v{s+hh}")
        for hh in range(2):
            a(f"v_pk_add_f32 v[{t+2*hh}:{t+2*hh+1}], v[{t+2*hh}:{t+2*hh+1}], v[26:27] op_sel_hi:[1,0]")
        for k in range(4):
            a(f"v_rcp_f32 v{t+k}, v{t+k}")
        for hh in range(2):
            a(f"v_pk_mul_f32 v[{t+4+2*hh}:{t+5+2*hh}], v[{t+4+2*hh}:{t+5+2*hh}], v[{acc+2*hh}:{acc+2*hh+1}]")
        for hh in range(2):
            a(f"v_lshlrev_b32 v{t+8+2*hh}, 16, v{x+hh}")
            a(f"v_and_b32 v{t+9+2*hh}, 0xffff0000, v{x+hh}")
        for hh in range(2):
            a(f"v_pk_fma_f32 v[{t+2*hh}:{t+2*hh+1}], v[{t+2*hh}:{t+2*hh+1}], v[{t+4+2*hh}:{t+5+2*hh}], v[{t+8+2*hh}:{t+9+2*hh}]")
        for hh in range(2):
            a(f"v_cvt_pk_bf16_f32 v{t+12+hh}, v{t+2*hh}, v{t+2*hh+1}")
        a(f"buffer_store_dwordx2 v[{t+12}:{t+13}], v234, {SRD_OUT}, s75 offen offset:{32*dt}")
    if o["stamps"]:
        stamp()
        a("s_memrealtime s[76:77]")
        a("s_waitcnt lgkmcnt(0)")
        n = nstamp[0]
        a("s_lshl_b32 s7, s2, 2")
        a("s_add_u32 s7, s7, s3")
        a("s_lshl_b32 s7, s7, 6")
        a(f"s_add_u32 s7, s7, {STAMP}")
        a("v_mov_b32 v1, 0")
        a("s_mov_b64 exec, 1")
        for i in range(n):
            a(f"v_mov_b32 v2, s{80+2*i}")
            a(f"buffer_store_dword v2, v1, {SRD_WS}, s7 offen offset:{4*i}")
        a("v_mov_b32 v2, s76")
        a(f"buffer_store_dword v2, v1, {SRD_WS}, s7 offen offset:60")
    a.label("L_end")
    a("s_endpgm")
    a.label("L_codeend")

    hdr = open("recurrent_scan__ssm_conv_s4__dense_activation_gelu__prompt.s.ref").read().split("; Override launch")[0]
    src = hdr + f"""; @launch grid=(256,1,1) block=(256,1,1) lds={LDS_BYTES}
.amdgcn_target "amdgcn-amd-amdhsa--gfx950"
.text
.globl {KNAME}
.p2align 8
.type {KNAME},@function
""" + a.text() + f""".section .rodata,"a"
.p2align 6
.amdhsa_kernel {KNAME}
  .amdhsa_next_free_vgpr 512
  .amdhsa_next_free_sgpr 102
  .amdhsa_accum_offset 256
  .amdhsa_group_segment_fixed_size 0
  .amdhsa_kernarg_size 136
  .amdhsa_user_sgpr_count 2
  .amdhsa_user_sgpr_kernarg_segment_ptr 1
  .amdhsa_system_sgpr_workgroup_id_x 1
.end_amdhsa_kernel
"""
    return src, a


if __name__ == "__main__":
    opts = {}
    out = "recurrent_scan__ssm_conv_s4__dense_activation_gelu__prompt.s"
    for arg in sys.argv[1:]:
        if arg.startswith("out="):
            out = arg[4:]
        else:
            k, v = arg.split("=")
            opts[k] = int(v)
    src, a = build(opts)
    open(out, "w").write(src)
    print("wrote", out, "instructions", sum(1 for k, _ in a.items if k == "i"), "nops added", a.nops_added)
```
